```python
import torch

def _softmax(x, axis=-1):
    return torch.softmax(x, dim=axis)
def _gelu(x):
    return torch.nn.functional.gelu(x, approximate="tanh")
def _silu(x):
    return torch.nn.functional.silu(x)
def _sigmoid(x):
    return torch.sigmoid(x)
def _layernorm(x, axis=-1, eps=1e-5):
    m = x.mean(dim=axis, keepdim=True)
    v = x.var(dim=axis, keepdim=True, unbiased=False)
    return (x - m) / torch.sqrt(v + eps)
def _scatter_add(tgt, idx, src, axis=0):
    return tgt.clone().index_add_(axis, idx, src)
def _segment_sum(src, seg, n):
    out = torch.zeros((n,) + src.shape[1:], dtype=src.dtype)
    return out.index_add_(0, seg, src)
def _pad(x, pw):
    flat = tuple(v for pair in reversed(pw) for v in pair)
    return torch.nn.functional.pad(x, flat)

kernel_name = 'interleave_layers__linear_attn_block__glu_gated_geglu__prompt'

def setup_inputs():

    _w = (lambda a: (lambda t: t.to(torch.bfloat16) if t.is_floating_point() else t)(torch.as_tensor(a)))
    def _A_setup():
        B, S, D = 1, 2048, 512
        return {
            "x": _w((lambda *s: torch.randn(*s, dtype=torch.bfloat16) * 0.05)(B, S, D)),
            "wqkv": _w((lambda *s: torch.randn(*s, dtype=torch.bfloat16) * 0.05)(D, 3 * D)),
            "wo": _w((lambda *s: torch.randn(*s, dtype=torch.bfloat16) * 0.05)(D, D)),
        }
    _A_in = _A_setup()

    def _B_setup():
        B, S, Dm, Df = 1, 2048, 512, 1376
        return {
            "x": _w((lambda *s: torch.randn(*s, dtype=torch.bfloat16) * 0.05)(B, S, Dm)),
            "w_gate": _w((lambda *s: torch.randn(*s, dtype=torch.bfloat16) * 0.8)(Dm, Df) * (Dm ** -0.5)),
            "w_up": _w((lambda *s: torch.randn(*s, dtype=torch.bfloat16) * 0.8)(Dm, Df) * (Dm ** -0.5)),
            "w_down": _w((lambda *s: torch.randn(*s, dtype=torch.bfloat16) * 0.8)(Df, Dm) * (Df ** -0.5)),
        }
    _B_in = _B_setup()

    return {
        "A_x": _A_in["x"],
        "A_wqkv": _A_in["wqkv"],
        "A_wo": _A_in["wo"],
        "B_x": _B_in["x"],
        "B_w_gate": _B_in["w_gate"],
        "B_w_up": _B_in["w_up"],
        "B_w_down": _B_in["w_down"],
    }

def reference(A_x, A_wqkv, A_wo, B_x, B_w_gate, B_w_up, B_w_down):
    def _A_ref(x, wqkv, wo):
        B, S, D = x.shape
        H = 32; Dh = D // H
        qkv = (lambda x, *d: x.permute(*d))((x @ wqkv).reshape(B, S, 3, H, Dh), 2, 0, 3, 1, 4)
        q, k, v = qkv[0], qkv[1], qkv[2]
        phi = lambda t: torch.where(t > 0, t + 1, torch.exp(t)) + 1e-6
        pq, pk = phi(q), phi(k)
        kv = torch.einsum("bhsd,bhse->bhde", pk, v)
        z = torch.einsum("bhsd->bhd", pk)
        num = torch.einsum("bhqd,bhde->bhqe", pq, kv)
        den = torch.einsum("bhqd,bhd->bhq", pq, z)[..., None] + 1e-6
        o = num / den
        return (lambda x, *d: x.permute(*d))(o, 0, 2, 1, 3).reshape(B, S, D) @ wo

    def _B_ref(x, w_gate, w_up, w_down):
        g = torch.einsum("bsd,df->bsf", x, w_gate)
        u = torch.einsum("bsd,df->bsf", x, w_up)
        h = _gelu(g) * u
        return torch.einsum("bsf,fd->bsd", h, w_down)

    x = A_x
    x = x + _A_ref(_layernorm(x, axis=-1), A_wqkv, A_wo)
    x = x + _B_ref(_layernorm(x, axis=-1), B_w_gate, B_w_up, B_w_down)
    x = x + _A_ref(_layernorm(x, axis=-1), A_wqkv, A_wo)
    x = x + _B_ref(_layernorm(x, axis=-1), B_w_gate, B_w_up, B_w_down)
    return x
```

```python
import sys
NEMPTY = int(sys.argv[1]) if len(sys.argv) > 1 else 0
MB = 1 << 20
OFF_X, OFF_XN, OFF_QKV, OFF_KV, OFF_O, OFF_G, OFF_U, OFF_H = 0, 4*MB, 8*MB, 20*MB, 24*MB, 32*MB, 48*MB, 64*MB
hdr = open('interleave_layers__linear_attn_block__glu_gated_geglu__prompt.s.ref').read().split('\n')
hdr = [l for l in hdr if l.startswith(';') and '@launch' not in l and 'Override' not in l and 'grid=ceil' not in l]
launches = []
code = []
descs = []
def kernel(name, body, y=False, vg=64):
    code.append(f".globl {name}\n.p2align 8\n.type {name},@function\n{name}:\n{body}\n")
    descs.append(f""".amdhsa_kernel {name}
  .amdhsa_next_free_vgpr {vg}
  .amdhsa_next_free_sgpr 96
  .amdhsa_accum_offset {vg}
  .amdhsa_group_segment_fixed_size 0
  .amdhsa_kernarg_size 80
  .amdhsa_user_sgpr_count 2
  .amdhsa_user_sgpr_kernarg_segment_ptr 1
  .amdhsa_system_sgpr_workgroup_id_x 1
""" + ("  .amdhsa_system_sgpr_workgroup_id_y 1\n" if y else "") + """  .amdhsa_float_denorm_mode_32 3
.end_amdhsa_kernel
""")
def srd(d, blo, bhi, off, size):
    return f"""
    s_add_u32 s{d}, s{blo}, {off}
    s_addc_u32 s{d+1}, s{bhi}, 0
    s_mov_b32 s{d+2}, {size}
    s_mov_b32 s{d+3}, 0x00020000
"""
kernel("cvt_kernel", f"""
    s_cmp_ge_u32 s2, 4096
    s_cbranch_scc1 cvt_done
    s_load_dwordx2 s[4:5], s[0:1], 0
    s_load_dwordx2 s[6:7], s[0:1], 72
    s_waitcnt lgkmcnt(0)
    {srd(8,4,5,0,2048*512*2)}
    {srd(12,6,7,OFF_X,2048*512*4)}
    s_lshl_b32 s3, s2, 8
    v_add_u32 v1, s3, v0
    v_lshlrev_b32 v2, 1, v1
    v_lshlrev_b32 v3, 2, v1
    buffer_load_ushort v4, v2, s[8:11], 0 offen
    s_waitcnt vmcnt(0)
    v_lshlrev_b32 v4, 16, v4
    buffer_store_dword v4, v3, s[12:15], 0 offen
    s_waitcnt vmcnt(0)
cvt_done:
    s_endpgm
""")
kernel("outk_kernel", f"""
    s_cmp_ge_u32 s2, 4096
    s_cbranch_scc1 outk_done
    s_load_dwordx2 s[4:5], s[0:1], 56
    s_load_dwordx2 s[6:7], s[0:1], 72
    s_waitcnt lgkmcnt(0)
    {srd(8,4,5,0,2048*512*2)}
    {srd(12,6,7,OFF_X,2048*512*4)}
    s_lshl_b32 s3, s2, 8
    v_add_u32 v1, s3, v0
    v_lshlrev_b32 v2, 1, v1
    v_lshlrev_b32 v3, 2, v1
    buffer_load_dword v4, v3, s[12:15], 0 offen
    s_waitcnt vmcnt(0)
    v_cvt_pk_bf16_f32 v4, v4, v4
    buffer_store_short v4, v2, s[8:11], 0 offen
    s_waitcnt vmcnt(0)
outk_done:
    s_endpgm
""")
def wave_sum(v, t):
    s = ""
    for off in (0x041F,0x081F,0x101F,0x201F,0x401F):
        s += f"    ds_swizzle_b32 v{t}, v{v} offset:{off:#x}\n    s_waitcnt lgkmcnt(0)\n    v_add_f32 v{v}, v{v}, v{t}\n"
    s += f"    s_nop 1\n    v_readlane_b32 s20, v{v}, 0\n    v_readlane_b32 s21, v{v}, 32\n    s_nop 3\n    v_mov_b32 v{v}, s20\n    v_add_f32 v{v}, s21, v{v}\n"
    return s
b = f"""
    s_cmp_ge_u32 s2, 2048
    s_cbranch_scc1 ln_done
    s_load_dwordx2 s[6:7], s[0:1], 72
    s_waitcnt lgkmcnt(0)
    {srd(8,6,7,OFF_X,2048*512*4)}
    {srd(12,6,7,OFF_XN,2048*512*4)}
    s_lshl_b32 s3, s2, 11
    v_lshlrev_b32 v1, 5, v0
    v_add_u32 v1, s3, v1
    buffer_load_dwordx4 v[4:7], v1, s[8:11], 0 offen
    buffer_load_dwordx4 v[8:11], v1, s[8:11], 0 offen offset:16
    s_waitcnt vmcnt(0)
    v_add_f32 v12, v4, v5
"""
for i in range(6,12): b += f"    v_add_f32 v12, v12, v{i}\n"
b += wave_sum(12,13)
b += "    v_mul_f32 v12, 0x3b000000, v12\n"
for i in range(4,12): b += f"    v_sub_f32 v{i}, v{i}, v12\n"
b += "    v_mul_f32 v14, v4, v4\n"
for i in range(5,12): b += f"    v_fmac_f32 v14, v{i}, v{i}\n"
b += wave_sum(14,13)
b += """    v_mul_f32 v14, 0x3b000000, v14
    v_add_f32 v14, 0x3727c5ac, v14
    v_rsq_f32 v14, v14
    s_nop 1
"""
for i in range(4,12): b += f"    v_mul_f32 v{i}, v{i}, v14\n"
b += """    buffer_store_dwordx4 v[4:7], v1, s[12:15], 0 offen
    buffer_store_dwordx4 v[8:11], v1, s[12:15], 0 offen offset:16
    s_waitcnt vmcnt(0)
ln_done:
    s_endpgm
"""
kernel("ln_kernel", b)

def gemm(name, a_off, K, w_arg, N, o_off, accum):
    NB = (N + 63)//64
    b = f"""
    s_cmp_ge_u32 s2, {NB}
    s_cbranch_scc1 {name}_done
    s_load_dwordx2 s[4:5], s[0:1], {w_arg}
    s_load_dwordx2 s[6:7], s[0:1], 72
    s_waitcnt lgkmcnt(0)
    {srd(8,4,5,0,K*N*2)}
    {srd(12,6,7,o_off,2048*N*4)}
    s_mul_i32 s16, s3, {8*K*4}
    s_add_u32 s16, s16, {a_off}
    s_add_u32 s18, s6, s16
    s_addc_u32 s19, s7, 0
    s_lshl_b32 s17, s2, 6
    v_add_u32 v1, s17, v0          ; col
    v_lshlrev_b32 v2, 1, v1
    v_add_u32 v3, {N*2}, v2
    v_add_u32 v4, {N*4}, v2
    v_add_u32 v5, {N*6}, v2
"""
    for r in range(8): b += f"    v_mov_b32 v{10+r}, 0\n"
    b += f"    s_mov_b32 s20, 0\n    s_mov_b32 s21, 0\n{name}_loop:\n"
    for r in range(8): b += f"    s_load_dwordx4 s[{32+4*r}:{35+4*r}], s[18:19], {r*K*4}\n"
    for j in range(4): b += f"    buffer_load_ushort v{20+j}, v{2+j}, s[8:11], s21 offen\n"
    b += "    s_waitcnt vmcnt(0) lgkmcnt(0)\n"
    for j in range(4): b += f"    v_lshlrev_b32 v{20+j}, 16, v{20+j}\n"
    for r in range(8):
        for j in range(4):
            b += f"    v_fmac_f32 v{10+r}, s{32+4*r+j}, v{20+j}\n"
    b += f"""    s_add_u32 s18, s18, 16
    s_addc_u32 s19, s19, 0
    s_add_u32 s21, s21, {4*N*2}
    s_add_u32 s20, s20, 4
    s_cmp_lt_u32 s20, {K}
    s_cbranch_scc1 {name}_loop
    s_mul_i32 s16, s3, {8*N*4}
    v_lshlrev_b32 v2, 2, v1
    v_add_u32 v2, s16, v2
    v_cmp_gt_u32 vcc, {N}, v1
    s_and_saveexec_b64 s[24:25], vcc
    s_cbranch_execz {name}_done
"""
    for r in range(8):
        if accum:
            b += f"""    buffer_load_dword v30, v2, s[12:15], 0 offen
    s_waitcnt vmcnt(0)
    v_cvt_pk_bf16_f32 v{10+r}, v{10+r}, v{10+r}
    v_and_b32 v{10+r}, 0xffff0000, v{10+r}
    v_add_f32 v{10+r}, v{10+r}, v30
    v_cvt_pk_bf16_f32 v{10+r}, v{10+r}, v{10+r}
    v_and_b32 v{10+r}, 0xffff0000, v{10+r}
"""
        b += f"    buffer_store_dword v{10+r}, v2, s[12:15], 0 offen\n    v_add_u32 v2, {N*4}, v2\n"
    b += f"    s_waitcnt vmcnt(0)\n{name}_done:\n    s_endpgm\n"
    kernel(name+"_kernel", b, y=True)
    return NB
NBq = gemm("gqkv", OFF_XN, 512, 8, 1536, OFF_QKV, False)
NBo = gemm("gwo", OFF_O, 512, 16, 512, OFF_X, True)
NBg = gemm("ggate", OFF_XN, 512, 32, 1376, OFF_G, False)
NBu = gemm("gup", OFF_XN, 512, 40, 1376, OFF_U, False)
NBd = gemm("gdown", OFF_H, 1376, 48, 512, OFF_X, True)

def phi(v, t):
    return f"""    v_mul_f32 v{t}, 0x3fb8aa3b, v{v}
    v_exp_f32 v{t}, v{t}
    v_add_f32 v{t+1}, 1.0, v{v}
    v_cmp_lt_f32 vcc, 0, v{v}
    s_nop 1
    v_cndmask_b32 v{v}, v{t}, v{t+1}, vcc
    v_add_f32 v{v}, 0x358637bd, v{v}
"""
b = f"""
    s_cmp_ge_u32 s2, 32
    s_cbranch_scc1 kv_done
    s_load_dwordx2 s[6:7], s[0:1], 72
    s_waitcnt lgkmcnt(0)
    {srd(8,6,7,OFF_QKV,2048*1536*4)}
    {srd(12,6,7,OFF_KV,32*272*4)}
    v_lshrrev_b32 v1, 4, v0   ; d
    v_and_b32 v2, 15, v0      ; e
    s_lshl_b32 s16, s2, 6     ; h*16*4
    v_lshlrev_b32 v3, 2, v1
    v_add_u32 v3, s16, v3
    v_add_u32 v3, 2048, v3
    v_lshlrev_b32 v4, 2, v2
    v_add_u32 v4, s16, v4
    v_add_u32 v4, 4096, v4
    v_mov_b32 v10, 0
    v_mov_b32 v11, 0
    s_mov_b32 s20, 0
kv_loop:
"""
for j in range(8):
    b += f"""    buffer_load_dword v{20+j}, v3, s[8:11], s20 offen
    buffer_load_dword v{30+j}, v4, s[8:11], s20 offen
    s_add_u32 s20, s20, 6144
"""
b += "    s_waitcnt vmcnt(0)\n"
for j in range(8):
    b += phi(20+j, 40)
    b += f"    v_fmac_f32 v10, v{20+j}, v{30+j}\n    v_add_f32 v11, v11, v{20+j}\n"
b += f"""    s_cmp_lt_u32 s20, {2048*6144}
    s_cbranch_scc1 kv_loop
    s_mul_i32 s16, s2, {272*4}
    v_lshlrev_b32 v5, 2, v0
    v_add_u32 v5, s16, v5
    buffer_store_dword v10, v5, s[12:15], 0 offen
    v_lshlrev_b32 v5, 2, v1
    v_add_u32 v5, s16, v5
    buffer_store_dword v11, v5, s[12:15], 0 offen offset:1024
    s_waitcnt vmcnt(0)
kv_done:
    s_endpgm
"""
kernel("kv_kernel", b)
b = f"""
    s_cmp_ge_u32 s2, 4096
    s_cbranch_scc1 o_done
    s_load_dwordx2 s[6:7], s[0:1], 72
    s_waitcnt lgkmcnt(0)
    {srd(8,6,7,OFF_QKV,2048*1536*4)}
    {srd(12,6,7,OFF_KV,32*272*4)}
    {srd(16,6,7,OFF_O,2048*512*4)}
    s_lshl_b32 s3, s2, 8
    v_add_u32 v1, s3, v0       ; idx
    v_lshrrev_b32 v2, 9, v1    ; s
    v_and_b32 v3, 511, v1      ; col
    v_lshrrev_b32 v4, 4, v3    ; h
    v_and_b32 v5, 15, v3       ; e
    v_mul_u32_u24 v6, 6144, v2
    v_lshlrev_b32 v7, 6, v4
    v_add_u32 v6, v6, v7
    v_mul_u32_u24 v7, {272*4}, v4
    v_lshlrev_b32 v8, 2, v5
    v_add_u32 v8, v7, v8       ; kv[h][0][e]
"""
for d in range(16):
    b += f"    buffer_load_dword v{20+d}, v6, s[8:11], 0 offen offset:{d*4}\n"
    b += f"    buffer_load_dword v{40+d}, v8, s[12:15], 0 offen offset:{d*64}\n"
    b += f"    buffer_load_dword v{60+d}, v7, s[12:15], 0 offen offset:{1024+d*4}\n"
b += "    v_mov_b32 v10, 0\n    v_mov_b32 v11, 0\n    s_waitcnt vmcnt(0)\n"
for d in range(16):
    b += phi(20+d, 12)
    b += f"    v_fmac_f32 v10, v{20+d}, v{40+d}\n    v_fmac_f32 v11, v{20+d}, v{60+d}\n"
b += """    v_add_f32 v11, 0x358637bd, v11
    v_rcp_f32 v11, v11
    s_nop 1
    v_mul_f32 v10, v10, v11
    v_lshlrev_b32 v1, 2, v1
    buffer_store_dword v10, v1, s[16:19], 0 offen
    s_waitcnt vmcnt(0)
o_done:
    s_endpgm
"""
kernel("o_kernel", b, vg=96)
b = f"""
    s_cmp_ge_u32 s2, 11008
    s_cbranch_scc1 glu_done
    s_load_dwordx2 s[6:7], s[0:1], 72
    s_waitcnt lgkmcnt(0)
    {srd(8,6,7,OFF_G,2048*1376*4)}
    {srd(12,6,7,OFF_U,2048*1376*4)}
    {srd(16,6,7,OFF_H,2048*1376*4)}
    s_lshl_b32 s3, s2, 8
    v_add_u32 v1, s3, v0
    v_lshlrev_b32 v1, 2, v1
    buffer_load_dword v2, v1, s[8:11], 0 offen
    buffer_load_dword v3, v1, s[12:15], 0 offen
    s_waitcnt vmcnt(0)
    v_mul_f32 v4, v2, v2
    v_mul_f32 v4, 0x3d372713, v4     ; 0.044715
    v_add_f32 v4, 1.0, v4
    v_mul_f32 v4, v4, v2
    v_mul_f32 v4, 0xc0135761, v4     ; -2*0.7978845608*log2(e)
    v_exp_f32 v4, v4
    s_nop 1
    v_add_f32 v4, 1.0, v4
    v_rcp_f32 v4, v4
    s_nop 1
    v_mul_f32 v2, v2, v4
    v_mul_f32 v2, v2, v3
    buffer_store_dword v2, v1, s[16:19], 0 offen
    s_waitcnt vmcnt(0)
glu_done:
    s_endpgm
"""
kernel("glu_kernel", b)
kernel("empty_kernel", "    s_endpgm\n")
def L(k, gx, gy, bx): launches.append(f"; @launch kernel={k}_kernel grid=({gx},{gy},1) block=({bx},1,1) lds=0")
L("cvt",4096,1,256)
for layer in range(2):
    L("ln",2048,1,64); L("gqkv",NBq,256,64); L("kv",32,1,256); L("o",4096,1,256); L("gwo",NBo,256,64)
    L("ln",2048,1,64); L("ggate",NBg,256,64); L("gup",NBu,256,64); L("glu",11008,1,256); L("gdown",NBd,256,64)
L("outk",4096,1,256)
for i in range(NEMPTY): L("empty",256,1,256)
import struct
c = -2*0.7978845608028654*1.4426950408889634
assert struct.unpack('<I', struct.pack('<f', c))[0] == 0xc0135761, hex(struct.unpack('<I', struct.pack('<f', c))[0])
out = '\n'.join(hdr) + '\n' + '\n'.join(launches) + '\n.amdgcn_target "amdgcn-amd-amdhsa--gfx950"\n.text\n' + '\n'.join(code) + '\n.section .rodata,"a"\n.p2align 6\n' + '\n.p2align 6\n'.join(descs)
print(out)
```
